```python
import torch

def _softmax(x, axis=-1):
    return torch.softmax(x, dim=axis)
def _gelu(x):
    return torch.nn.functional.gelu(x, approximate="tanh")
def _silu(x):
    return torch.nn.functional.silu(x)
def _sigmoid(x):
    return torch.sigmoid(x)
def _layernorm(x, axis=-1, eps=1e-5):
    m = x.mean(dim=axis, keepdim=True)
    v = x.var(dim=axis, keepdim=True, unbiased=False)
    return (x - m) / torch.sqrt(v + eps)
def _scatter_add(tgt, idx, src, axis=0):
    return tgt.clone().index_add_(axis, idx, src)
def _segment_sum(src, seg, n):
    out = torch.zeros((n,) + src.shape[1:], dtype=src.dtype)
    return out.index_add_(0, seg, src)
def _pad(x, pw):
    flat = tuple(v for pair in reversed(pw) for v in pair)
    return torch.nn.functional.pad(x, flat)

kernel_name = 'standalone__weight_only_int_quip_2__prompt'

def setup_inputs():

    _w = (lambda a: (lambda t: t.to(torch.bfloat16) if t.is_floating_point() else t)(torch.as_tensor(a)))
    B, S, D, F = 1, 2048, 576, 4608
    nbits = max(2, min(4, int(3)))
    G = 32 if 32 > 0 else D
    D = (D // G) * G
    ng = D // G
    qmax = 1 << nbits
    qw = torch.randint(0, qmax, (D, F)).to(torch.int32)
    zp = torch.randint(0, qmax, (ng, F)).to(float)
    sc = torch.abs((lambda *s: torch.randn(*s, dtype=torch.bfloat16) * 0.05)(ng, F)).to(float) * 0.1 + 0.02
    return {
        "x": _w((lambda *s: torch.randn(*s, dtype=torch.bfloat16) * 0.05)(B, S, D)),
        "qw": _w(qw),
        "scales": _w(sc),
        "zeros": _w(zp),
    }

def reference(x, qw, scales, zeros):
    B, S, D = x.shape
    ng, F = scales.shape
    G = D // ng
    s = (lambda x, n, axis: torch.repeat_interleave(x, n, dim=axis))(scales, G, axis=0)
    z = (lambda x, n, axis: torch.repeat_interleave(x, n, dim=axis))(zeros, G, axis=0)
    w = ((lambda x, dt: x.to(dt))(qw, x.dtype) - z) * s
    return torch.einsum("bsd,df->bsf", x, w)
```

```python
import sys
NAME = "standalone__weight_only_int_quip_2__prompt"
HDR = open('cdna_kernels/%s.s.ref' % NAME).read().split('; Override launch')[0]
L = []
def e(s): L.append("    " + s)
def lab(s): L.append(s + ":")

M, K, N = 2048, 576, 4608
e("s_cmp_ge_u32 s2, 1024")
e("s_cbranch_scc1 L_done")
e("s_load_dwordx4 s[4:7], s[0:1], 0")
e("s_load_dwordx4 s[8:11], s[0:1], 16")
e("s_load_dwordx2 s[12:13], s[0:1], 32")
e("s_lshr_b32 s36, s2, 5")
e("s_and_b32 s37, s2, 31")
e("v_and_b32 v1, 15, v0")
e("v_lshrrev_b32 v2, 4, v0")
e("s_waitcnt lgkmcnt(0)")
for (d, b, n) in ((16, 4, M*K*2), (20, 6, K*N*4), (24, 8, 18*N*2), (28, 10, 18*N*2), (32, 12, M*N*2)):
    e(f"s_mov_b32 s{d}, s{b}")
    e(f"s_and_b32 s{d+1}, s{b+1}, 0xffff")
    e(f"s_mov_b32 s{d+2}, {n}")
    e(f"s_mov_b32 s{d+3}, 0x20000")
e("s_lshl_b32 s38, s36, 6")
e("v_add_u32 v3, s38, v1")
e("s_movk_i32 s39, 1152")
e("v_mul_lo_u32 v3, v3, s39")
e("v_lshl_add_u32 v4, v2, 4, v3")
for i in range(1, 4):
    e(f"v_add_u32 v{4+i}, {18432*i}, v4")
e("s_mul_i32 s40, s37, 144")
e("s_mov_b32 s39, 147456")
e("v_mul_lo_u32 v3, v2, s39")
e("v_lshl_add_u32 v10, v1, 3, s40")
e("v_lshl_add_u32 v8, v10, 2, v3")
e("v_add_u32 v11, s40, v1")
e("v_add_u32 v11, 128, v11")
e("v_lshl_add_u32 v9, v11, 2, v3")
e("v_lshlrev_b32 v10, 1, v10")
e("v_lshlrev_b32 v11, 1, v11")
ACC = 112
AF = 12
Q = 28
for r in range(144):
    e(f"v_mov_b32 v{ACC+r}, 0")
e("s_mov_b32 s41, 0")
e("s_mov_b32 s42, 0")
e("s_mov_b32 s43, 0")
e("s_mov_b32 s44, 0")
lab("L_loop")
for i in range(4):
    e(f"buffer_load_dwordx4 v[{AF+4*i}:{AF+4*i+3}], v{4+i}, s[16:19], s42 offen")
e("buffer_load_dwordx4 v[100:103], v10, s[24:27], s44 offen")
e("buffer_load_ushort v104, v11, s[24:27], s44 offen")
e("buffer_load_dwordx4 v[106:109], v10, s[28:31], s44 offen")
e("buffer_load_ushort v105, v11, s[28:31], s44 offen")
e("s_mov_b32 s45, s43")
for kk in range(8):
    e(f"buffer_load_dwordx4 v[{Q+8*kk}:{Q+8*kk+3}], v8, s[20:23], s45 offen")
    e(f"buffer_load_dwordx4 v[{Q+8*kk+4}:{Q+8*kk+7}], v8, s[20:23], s45 offen offset:16")
    e(f"buffer_load_dword v{Q+64+kk}, v9, s[20:23], s45 offen")
    e("s_add_u32 s45, s45, 18432")
e("s_waitcnt vmcnt(0)")
def qreg(kk, t):
    return Q + 8*kk + t if t < 8 else Q + 64 + kk
for t in range(9):
    if t < 8:
        sr, zr = 100 + t//2, 106 + t//2
        if t % 2 == 0:
            e(f"v_lshlrev_b32 v110, 16, v{sr}")
            e(f"v_lshlrev_b32 v111, 16, v{zr}")
        else:
            e(f"v_and_b32 v110, 0xffff0000, v{sr}")
            e(f"v_and_b32 v111, 0xffff0000, v{zr}")
    else:
        e("v_lshlrev_b32 v110, 16, v104")
        e("v_lshlrev_b32 v111, 16, v105")
    e("v_mul_f32 v111, v110, v111")
    for kk in range(8):
        r = qreg(kk, t)
        e(f"v_cvt_f32_i32 v{r}, v{r}")
        e(f"v_fma_f32 v{r}, v{r}, v110, -v111")
    for j in range(4):
        e(f"v_cvt_pk_bf16_f32 v{j}, v{qreg(2*j, t)}, v{qreg(2*j+1, t)}")
    e("s_nop 1")
    for i in range(4):
        a = ACC + (i*9 + t)*4
        e(f"v_mfma_f32_16x16x32_bf16 v[{a}:{a+3}], v[{AF+4*i}:{AF+4*i+3}], v[0:3], v[{a}:{a+3}]")
e("s_add_u32 s42, s42, 64")
e("s_add_u32 s43, s43, %d" % (32*18432))
e("s_add_u32 s44, s44, 9216")
e("s_add_u32 s41, s41, 1")
e("s_cmp_lt_u32 s41, 18")
e("s_cbranch_scc1 L_loop")
e("s_nop 15")
e("v_mbcnt_lo_u32_b32 v0, -1, 0")
e("v_mbcnt_hi_u32_b32 v0, -1, v0")
e("v_and_b32 v1, 15, v0")
e("v_lshrrev_b32 v2, 4, v0")
e("v_lshl_add_u32 v3, v2, 2, s38")
e("s_movk_i32 s39, 9216")
e("v_mul_lo_u32 v3, v3, s39")
e("v_add_u32 v10, v3, v10")
e("v_add_u32 v11, v3, v11")
for i in range(4):
    for r in range(4):
        so = (16*i + r) * 9216
        e(f"s_mov_b32 s45, {so}")
        T = 12 + ((i*4+r) % 2) * 8
        for j in range(4):
            a0 = ACC + (i*9 + 2*j)*4 + r
            a1 = ACC + (i*9 + 2*j+1)*4 + r
            e(f"v_cvt_pk_bf16_f32 v{T+j}, v{a0}, v{a1}")
        a8 = ACC + (i*9 + 8)*4 + r
        e(f"v_cvt_pk_bf16_f32 v{T+4}, v{a8}, v{a8}")
        e(f"buffer_store_dwordx4 v[{T}:{T+3}], v10, s[32:35], s45 offen")
        e(f"buffer_store_short v{T+4}, v11, s[32:35], s45 offen")
        e("s_nop 1")
e("s_waitcnt vmcnt(0)")
lab("L_done")
e("s_endpgm")

out = HDR + "; @launch grid=(1024,1,1) block=(64,1,1) lds=0\n"
out += '.amdgcn_target "amdgcn-amd-amdhsa--gfx950"\n.text\n.globl %s_kernel\n.p2align 8\n.type %s_kernel,@function\n%s_kernel:\n' % (NAME, NAME, NAME)
out += "\n".join(L) + "\n"
out += """.section .rodata,"a"
.p2align 6
.amdhsa_kernel %s_kernel
  .amdhsa_next_free_vgpr 256
  .amdhsa_next_free_sgpr 102
  .amdhsa_accum_offset 256
  .amdhsa_group_segment_fixed_size 0
  .amdhsa_kernarg_size 56
  .amdhsa_user_sgpr_count 2
  .amdhsa_user_sgpr_kernarg_segment_ptr 1
  .amdhsa_system_sgpr_workgroup_id_x 1
.end_amdhsa_kernel
""" % NAME
open(sys.argv[1], 'w').write(out)
```
